```python
import torch

def _softmax(x, axis=-1):
    return torch.softmax(x, dim=axis)

def _gelu(x):
    return torch.nn.functional.gelu(x, approximate='tanh')

def _silu(x):
    return torch.nn.functional.silu(x)

def _sigmoid(x):
    return torch.sigmoid(x)

def _layernorm(x, axis=-1, eps=1e-05):
    m = x.mean(dim=axis, keepdim=True)
    v = x.var(dim=axis, keepdim=True, unbiased=False)
    return (x - m) / torch.sqrt(v + eps)

def _scatter_add(tgt, idx, src, axis=0):
    return tgt.clone().index_add_(axis, idx, src)

def _segment_sum(src, seg, n):
    out = torch.zeros((n,) + src.shape[1:], dtype=src.dtype)
    return out.index_add_(0, seg, src)

def _pad(x, pw):
    flat = tuple((v for pair in reversed(pw) for v in pair))
    return torch.nn.functional.pad(x, flat)
kernel_name = 'standalone__tree_speculative_verify_tree_attention_over_candidate_token_tree__sampling'

def setup_inputs():

    _w = lambda a: (lambda t: t.to(torch.bfloat16) if t.is_floating_point() else t)(torch.as_tensor(a))
    B, Hq, Hkv, T, C, D = (8, 32, 4, 32, 8192, 128)
    tree_mask = torch.zeros((B, T, T), dtype=float)
    for b in range(B):
        parent = torch.zeros(T, dtype=torch.int64)
        for i in range(1, T):
            parent[i] = int(torch.randint(0, i, (1,)).item())
        for i in range(T):
            j = i
            tree_mask[b, i, j] = 1.0
            while j > 0:
                j = parent[j]
                tree_mask[b, i, j] = 1.0
    return {'q': _w((lambda *s: torch.randn(*s, dtype=torch.bfloat16) * 0.8)(B, Hq, T, D)), 'k_cache': _w((lambda *s: torch.randn(*s, dtype=torch.bfloat16) * 0.8)(B, Hkv, C, D)), 'v_cache': _w((lambda *s: torch.randn(*s, dtype=torch.bfloat16) * 0.05)(B, Hkv, C, D)), 'k_tree': _w((lambda *s: torch.randn(*s, dtype=torch.bfloat16) * 0.8)(B, Hkv, T, D)), 'v_tree': _w((lambda *s: torch.randn(*s, dtype=torch.bfloat16) * 0.05)(B, Hkv, T, D)), 'tree_mask': _w(tree_mask)}

def reference(q, k_cache, v_cache, k_tree, v_tree, tree_mask):
    B, Hq, T, D = q.shape
    Hkv, C = (k_cache.shape[1], k_cache.shape[2])
    rep = Hq // Hkv
    kc = (lambda x, n, axis: torch.repeat_interleave(x, n, dim=axis))(k_cache, rep, axis=1)
    vc = (lambda x, n, axis: torch.repeat_interleave(x, n, dim=axis))(v_cache, rep, axis=1)
    kt = (lambda x, n, axis: torch.repeat_interleave(x, n, dim=axis))(k_tree, rep, axis=1)
    vt = (lambda x, n, axis: torch.repeat_interleave(x, n, dim=axis))(v_tree, rep, axis=1)
    k = torch.concatenate([kc, kt], axis=2)
    v = torch.concatenate([vc, vt], axis=2)
    scale = D ** (-0.5)
    scores = torch.einsum('bhqd,bhkd->bhqk', q, k) * scale
    ctx_mask = torch.ones((B, 1, T, C), dtype=scores.dtype)
    tm = tree_mask[:, None, :, :].clone()
    full_mask = torch.concatenate([ctx_mask, tm], axis=-1)
    scores = scores + (1.0 - full_mask) * -1000000000.0
    p = _softmax(scores, axis=-1)
    return torch.einsum('bhqk,bhkd->bhqd', p, v)
```

```python
import re

TRANS = ("v_exp_f32", "v_log_f32", "v_rcp_f32", "v_rsq_f32", "v_sqrt_f32", "v_sin_f32", "v_cos_f32",
         "v_rcp_iflag_f32")

_REG = re.compile(r"^(-)?(abs\()?([vas])(\d+|\[(\d+):(\d+)\])\)?$")


def parse_reg(tok):
    tok = tok.strip()
    if tok == "vcc":
        return [("s", "vcc")]
    if tok == "exec":
        return [("s", "exec")]
    if tok == "m0":
        return [("s", "m0")]
    m = _REG.match(tok)
    if not m:
        return []
    f = m.group(3)
    if m.group(5) is not None:
        return [(f, i) for i in range(int(m.group(5)), int(m.group(6)) + 1)]
    return [(f, int(m.group(4)))]


class Ins:
    __slots__ = ("text", "op", "kind", "rd", "wr", "srcc", "ab", "passes", "nop", "label", "data")

    def __init__(self, text):
        self.text = text
        self.label = None
        self.rd = []
        self.wr = []
        self.srcc = []
        self.ab = []
        self.data = []
        self.passes = 0
        self.nop = 1
        t = text.split(";")[0].strip()
        if t.endswith(":"):
            self.kind = "label"
            self.op = ""
            self.label = t[:-1]
            self.nop = 0
            return
        if not t or t.startswith("."):
            self.kind = "none"
            self.op = ""
            self.nop = 0
            return
        parts = t.split(None, 1)
        op = parts[0]
        self.op = op
        rest = parts[1] if len(parts) > 1 else ""
        ops = [o.strip() for o in rest.split(",")] if rest else []
        mods = []
        if ops:
            sp = ops[-1].split()
            ops[-1] = sp[0] if sp else ""
            mods = sp[1:]
        regs = [parse_reg(o) for o in ops]
        if op.startswith("v_mfma"):
            self.kind = "mfma"
            self.wr = regs[0]
            self.ab = regs[1] + regs[2]
            self.srcc = regs[3]
            self.rd = self.ab + self.srcc
            self.passes = 8 if "32x32x16" in op else 4
        elif op.startswith("v_"):
            self.kind = "trans" if op.replace("_e32", "").replace("_e64", "") in TRANS else "valu"
            if op.startswith("v_permlane"):
                self.kind = "valu"
                self.wr = regs[0] + regs[1]
                self.rd = regs[0] + regs[1]
            elif op.startswith("v_cmp"):
                self.wr = regs[0]
                self.rd = sum(regs[1:], [])
            elif op.startswith("v_add_co") or op.startswith("v_addc_co") or op.startswith("v_sub_co"):
                self.wr = regs[0] + regs[1]
                self.rd = sum(regs[2:], [])
            elif op == "v_nop":
                pass
            else:
                self.wr = regs[0]
                self.rd = sum(regs[1:], [])
                if op.startswith("v_fmac") or op.startswith("v_dot2c"):
                    self.rd = self.rd + regs[0]
                if op.startswith("v_cndmask") and len(regs) == 3:
                    self.rd = self.rd + [("s", "vcc")]
        elif op.startswith("ds_"):
            self.kind = "ds"
            if op.startswith("ds_read") or op.startswith("ds_bpermute") or op.startswith("ds_swizzle"):
                self.wr = regs[0]
                self.rd = sum(regs[1:], [])
            else:
                self.rd = sum(regs, [])
        elif op.startswith("buffer_") or op.startswith("global_"):
            self.kind = "vmem"
            if op in ("buffer_wbl2", "buffer_inv"):
                pass
            elif "lds" in mods:
                self.rd = sum(regs, []) + [("s", "m0")]
                self.kind = "dma"
            elif "_load" in op:
                self.wr = regs[0]
                self.rd = sum(regs[1:], [])
            elif op.startswith("buffer_store") or op.startswith("buffer_atomic"):
                self.rd = sum(regs, [])
                if "x4" in op or "x3" in op:
                    self.data = regs[0]
                if op.startswith("buffer_atomic") and "sc0" in mods:
                    self.wr = regs[0]
            else:
                self.rd = sum(regs, [])
                if "x4" in op or "x3" in op:
                    self.data = regs[1]
        elif op.startswith("s_"):
            self.kind = "salu"
            if op == "s_nop":
                self.nop = int(ops[0], 0) + 1
            elif op in ("s_waitcnt", "s_barrier", "s_endpgm", "s_sleep", "s_setprio", "s_branch") or op.startswith("s_cbranch"):
                pass
            elif op.startswith("s_cmp"):
                self.rd = sum(regs, [])
            elif op.startswith("s_load") or op.startswith("s_mem"):
                self.kind = "smem"
                self.wr = regs[0]
                self.rd = sum(regs[1:], [])
            elif op == "s_setpc_b64":
                self.rd = regs[0]
            else:
                self.wr = regs[0] if regs else []
                self.rd = sum(regs[1:], [])
        else:
            raise ValueError("unknown instruction: " + text)


def required_gap(p, c):
    need = 0
    pw = set(p.wr)
    if p.kind in ("valu", "trans"):
        vw = {r for r in pw if r[0] in "va"}
        sw = {r for r in pw if r[0] == "s"}
        if c.kind == "mfma" and vw & set(c.rd):
            need = max(need, 2)
        if p.kind == "trans" and c.kind in ("valu", "mfma") and vw & (set(c.rd) | set(c.wr)):
            need = max(need, 1)
        if p.kind == "trans" and c.kind in ("vmem", "ds", "dma") and vw & set(c.rd):
            need = max(need, 1)
        if c.op.startswith("v_permlane") and vw & set(c.rd):
            need = max(need, 2)
        if (c.op.startswith("v_readfirstlane") or c.op.startswith("v_readlane")) and vw & set(c.rd):
            need = max(need, 1)
        if "dpp" in c.text and vw & set(c.rd):
            need = max(need, 2)
        if sw:
            if c.kind in ("valu", "trans") and sw & set(c.rd):
                need = max(need, 2)
                if c.op.startswith("v_readlane") or c.op.startswith("v_writelane"):
                    need = max(need, 4)
            if c.kind in ("vmem", "dma") and sw & set(c.rd):
                need = max(need, 5)
            if c.kind in ("salu", "smem") and sw & set(c.rd):
                need = max(need, 1)
            if ("s", "exec") in sw and c.kind == "mfma":
                need = max(need, 4)
    if p.kind == "salu" and ("s", "m0") in pw and c.kind == "dma":
        need = max(need, 1)
    if p.kind == "mfma":
        big = {8: 12, 4: 8}[p.passes]
        ovl = {8: 10, 4: 6}[p.passes]
        if c.kind == "mfma":
            if pw & set(c.ab):
                need = max(need, big)
            if pw & set(c.srcc):
                if c.srcc == p.wr and c.passes == p.passes:
                    pass
                else:
                    need = max(need, ovl)
            elif pw & set(c.wr):
                need = max(need, ovl)
        elif c.kind in ("valu", "trans", "vmem", "ds", "dma"):
            if pw & (set(c.rd) | set(c.wr)):
                need = max(need, big)
        if c.kind in ("valu", "trans") and set(p.srcc) & set(c.wr):
            need = max(need, {8: 7, 4: 3}[p.passes])
    if p.kind == "vmem" and p.data:
        if set(p.data) & set(c.wr):
            need = max(need, 2 if c.kind in ("valu", "trans") else 1)
    return need


class Asm:
    def __init__(self):
        self.ins = []

    def __call__(self, text):
        for line in text.strip("\n").split("\n"):
            line = line.strip()
            if not line:
                continue
            self.ins.append(Ins(line))

    def label(self, name):
        self.ins.append(Ins(name + ":"))

    def comment(self, text):
        self.ins.append(Ins("; " + text))

    def extend(self, other):
        self.ins.extend(other.ins)

    def text(self):
        out = []
        for i in self.ins:
            if i.kind == "label" or i.text.startswith("."):
                out.append(i.text)
            else:
                out.append("    " + i.text)
        return "\n".join(out) + "\n"


def check_hazards(seq, fix=False, window=24, name=""):
    out = []
    viol = []
    for c in seq:
        if c.kind in ("label", "none"):
            out.append(c)
            continue
        dist = 0
        need_extra = 0
        worst = None
        for p in reversed(out):
            if p.kind in ("label", "none"):
                continue
            req = required_gap(p, c)
            if req > dist and req - dist > need_extra:
                need_extra = req - dist
                worst = p
            dist += p.nop
            if dist > window:
                break
        if need_extra:
            viol.append((worst.text, c.text, need_extra))
            if fix:
                n = need_extra
                while n > 0:
                    k = min(n, 16)
                    out.append(Ins("s_nop %d" % (k - 1)))
                    n -= k
        out.append(c)
    return out, viol


def issue_cost(i):
    if i.kind in ("label", "none"):
        return 0
    if i.kind == "mfma":
        return 8
    if i.kind == "trans":
        return 8
    if i.op == "s_nop":
        return 4 * i.nop
    return 4
```

```python
import os
import struct
import sys
sys.path.insert(0, "dev")
from asmlib import Asm, Ins, check_hazards, issue_cost

NAME = "standalone__tree_speculative_verify_tree_attention_over_candidate_token_tree__sampling"


def f32(x):
    return "0x%08x" % struct.unpack("<I", struct.pack("<f", x))[0]


def env(name, default):
    return type(default)(os.environ.get(name, default))


LOG2E = 1.4426950408889634
CSCALE = (128 ** -0.5) * LOG2E
NS = 8
NT = 32
KRING = 0
VRING = 65536
TREEV = 131072
TREEK = 131072 + 8192
LDS_BYTES = 131072 + 8192
THR = 1024.0
NTFLAG = env("NT", " nt")
DIAG = env("DIAG", 0)
STFLAG = env("STFLAG", " sc1")
LDFLAG = env("LDFLAG", " sc1")
FLFLAG = env("FLFLAG", " sc1")
PD = env("PD", 4)
U = env("U", 4)
ROT = env("ROT", 1)
CPF = env("CPF", 1)
DBGC = 32
WS_ML = 0x1000000
WS_FLAG = 0x1100000
SPIN_MAX = 1 << 16

O = {"A": 128, "B": 192}
S = {"A": 96, "B": 112}
NM = {"A": 64, "B": 80}
P = {"A": 48, "B": 56}
E = 32
MSK = 40
KA = 16
VA = 24
DK0, DK1, DV = 28, 29, 30
L = {"A": 8, "B": 9}
LT0, LT1 = 10, 11
VCHK = 12
VFRG = 13
VMSK = 14
VDIAG = 15
VTA = 31
QF = {"A": 0, "B": 32}
KF = [64, 96]
VF = [128, 160]
QT, KT = 192, 224
sK, sV, sQ, sW = 28, 32, 36, 40
sWAVE, sWOFF = 44, 45
sKO, sKE, sVE, sU = 46, 47, 54, 55
sW0, sW1 = 26, 27
sTHR = 48
sCNT = 51
sRET = 52
sG, sJ = 56, 57
sKT, sVT, sMK, sDB, sOUT = 72, 76, 80, 84, 88
sC = 92


def vr(b, n):
    return "v[%d:%d]" % (b, b + n - 1)


def ar(b, n):
    return "a[%d:%d]" % (b, b + n - 1)


def sr(b, n):
    return "s[%d:%d]" % (b, b + n - 1)


class Emit(Asm):
    def __init__(self):
        super().__init__()
        self.vm = []
        self.lg = []

    def op(self, t):
        if isinstance(t, str):
            self(t)
        elif t[0] == "VM":
            self(t[1])
            self.vm.append(t[2])
        elif t[0] == "LG":
            self(t[1])
            self.lg.append(t[2])
        elif t[0] == "WAIT":
            self.wait(t[1], t[2])
        else:
            raise ValueError(t)

    @staticmethod
    def _need(lst, tags):
        last = -1
        for i, x in enumerate(lst):
            if x in tags:
                last = i
        if last < 0:
            return None
        return len(lst) - 1 - last

    def wait(self, vmtags=(), lgtags=()):
        parts = []
        if vmtags == "ALL":
            if self.vm:
                parts.append("vmcnt(0)")
                self.vm = []
        else:
            n = self._need(self.vm, vmtags)
            if n is not None:
                assert n <= 63, n
                parts.append("vmcnt(%d)" % n)
                self.vm = self.vm[len(self.vm) - n:] if n else []
        if lgtags == "ALL":
            if self.lg:
                parts.append("lgkmcnt(0)")
                self.lg = []
        else:
            n = self._need(self.lg, lgtags)
            if n is not None:
                n = min(n, 15)
                parts.append("lgkmcnt(%d)" % n)
                self.lg = self.lg[len(self.lg) - n:] if n else []
        if parts:
            self("s_waitcnt " + " ".join(parts))


def cost(t):
    if isinstance(t, str):
        return issue_cost(Ins(t))
    return 4


def stamp(a, idx):
    if not DIAG:
        return
    a("s_memtime s[60:61]")
    a("s_memrealtime s[70:71]")
    a("s_waitcnt lgkmcnt(0)")
    a.lg = []
    a("s_nop 0")
    a("v_writelane_b32 v%d, s60, %s" % (VDIAG, idx))
    a("v_writelane_b32 v%d, s70, %s" % (VDIAG, idx + 32))


def mfma_qk(X, kbuf, s, zero=False):
    c = ("0" if zero else vr(NM[X], 16)) if s == 0 else vr(S[X], 16)
    return "v_mfma_f32_32x32x16_bf16 %s, %s, %s, %s" % (vr(S[X], 16), ar(KF[kbuf] + 4 * s, 4), ar(QF[X] + 4 * s, 4), c)


def mfma_pv(X, vbuf, kh, db, zero=False):
    o = vr(O[X] + 16 * db, 16)
    return "v_mfma_f32_32x32x16_bf16 %s, %s, %s, %s" % (
        o, ar(VF[vbuf] + 16 * kh + 4 * db, 4), vr(P[X] + 4 * kh, 4), "0" if (zero and kh == 0) else o)


def max_list(X, t1="v1", t2="v2"):
    s = S[X]
    out = ["v_max3_f32 %s, v%d, v%d, v%d" % (t1, s, s + 1, s + 2)]
    for i in range(3, 15, 2):
        out.append("v_max3_f32 %s, %s, v%d, v%d" % (t1, t1, s + i, s + i + 1))
    out.append("v_max_f32 %s, %s, v%d" % (t1, t1, s + 15))
    out.append("v_mov_b32 %s, %s" % (t2, t1))
    out.append("s_nop 1")
    out.append("v_permlane32_swap_b32 %s, %s" % (t1, t2))
    out.append("v_max_f32 %s, %s, %s" % (t1, t1, t2))
    out.append("v_ceil_f32 %s, %s" % (t1, t1))
    return out


def softmax_list(X, tag, first=False, reg=True):
    s = S[X]
    out = []
    if first:
        t1, t2 = ("v1", "v2") if X == "A" else ("v3", "v4")
        out += max_list(X, t1, t2)
        for i in range(16):
            out.append("v_sub_f32 v%d, v%d, %s" % (s + i, s + i, t1))
        out.append("v_sub_f32 v%d, 0, %s" % (NM[X], t1))

    def e(i):
        return "v%d" % (E + (i % 8))

    def EXP(i):
        out.append("v_exp_f32 %s, v%d" % (e(i), s + i))

    def CVT(k):
        out.append("v_cvt_pk_bf16_f32 v%d, %s, %s" % (P[X] + k, e(2 * k), e(2 * k + 1)))

    def ADD(k):
        if k == 0:
            return ["v_add_f32 v%d, %s, %s" % (LT0, e(0), e(1))]
        if k == 1:
            return ["v_add_f32 v%d, %s, %s" % (LT1, e(2), e(3))]
        return ["v_add_f32 v%d, v%d, %s" % (LT0, LT0, e(2 * k)), "v_add_f32 v%d, v%d, %s" % (LT1, LT1, e(2 * k + 1))]
    EXP(0)
    EXP(1)
    for k in range(1, 8):
        EXP(2 * k)
        CVT(k - 1)
        EXP(2 * k + 1)
        out.extend(ADD(k - 1))
    CVT(7)
    out.extend(ADD(7))
    if first:
        out.append("v_add_f32 v%d, v%d, v%d" % (L[X], LT0, LT1))
        for i in range(1, 16):
            out.append("v_mov_b32 v%d, v%d" % (NM[X] + i, NM[X]))
        return out
    out.append("v_add_f32 v%d, v%d, v%d" % (LT0, LT0, LT1))
    if tag is not None:
        out.append("v_cmp_nge_f32 vcc, s%d, v%d" % (sTHR, LT0))
        out.append("s_cbranch_vccnz STUB_%s" % tag)
        out.append("BACK_%s:" % tag)
        if reg:
            stubs.append((X, tag))
    out.append("v_add_f32 v%d, v%d, v%d" % (L[X], L[X], LT0))
    return out


def spread(lst, gaps):
    costs = [cost(t) for t in lst]
    tot = sum(costs)
    res = {g: [] for g in gaps}
    cum = 0
    for t, c in zip(lst, costs):
        idx = min(len(gaps) - 1, int((cum + c / 2.0) * len(gaps) / tot))
        res[gaps[idx]].append(t)
        cum += c
    return res


def vread(j, kh, u, db):
    kb = 16 * kh + 8 * u
    return ("LG", "ds_read_b64_tr_b16 %s, v%d offset:%d" % (
        ar(VF[j % 2] + 16 * kh + 4 * db + 2 * u, 2), VA + db, (j % U) * 8192 + kb * 256), "V")


def kread(j, s):
    return ("LG", "ds_read_b128 %s, v%d offset:%d" % (ar(KF[j % 2] + 4 * s, 4), KA + s, (j % U) * 8192), "K")


def m0_base(q):
    if U == 8:
        return sWOFF, (q % 8) * 8192
    return (sW0 if (q // 4) % 2 == 0 else sW1), (q % 4) * 8192


def dma_group(q, tag):
    adv = ["s_mov_b32 s%d, s%d" % (sVE, sKE),
           "s_add_u32 s%d, s%d, 8192" % (sKO, sKO),
           "s_and_b32 s%d, s%d, 0x3ffff" % (sKO, sKO),
           "s_cmp_lt_u32 s%d, %d" % (sU, NT),
           "s_cselect_b32 s%d, s%d, 0x40000" % (sKE, sKO),
           "s_add_u32 s%d, s%d, 1" % (sU, sU)]
    b, o = m0_base(q)
    k = ["s_add_u32 m0, s%d, %d" % (b, KRING + o),
         ("VM", "buffer_load_dwordx4 v%d, %s, s%d offen%s lds" % (DK0, sr(sK, 4), sKE, NTFLAG), tag),
         ("VM", "buffer_load_dwordx4 v%d, %s, s%d offen offset:1024%s lds" % (DK1, sr(sK, 4), sKE, NTFLAG), tag)]
    b, o = m0_base(q - 1)
    v = ["s_add_u32 m0, s%d, %d" % (b, VRING + o),
         ("VM", "buffer_load_dwordx4 v%d, %s, s%d offen%s lds" % (DV, sr(sV, 4), sVE, NTFLAG), tag),
         ("VM", "buffer_load_dwordx4 v%d, %s, s%d offen offset:1024%s lds" % (DV, sr(sV, 4), sVE, NTFLAG), tag)]
    return adv, k, v


def dma_flat(q, tag):
    adv, k, v = dma_group(q, tag)
    return adv[:5] + [k[0], adv[5]] + k[1:] + [v[0], "s_nop 0"] + v[1:]


stubs = []
GL_B = [26, 27, 28, 29, 30, 31, 0, 1, 2, 3, 4, 5, 6, 7]
GL_A = list(range(10, 24))


def conv_q(X, i):
    r = 128 + (32 if X == "B" else 0) + i
    t0 = 32 + 2 * (i % 4)
    return ["v_lshlrev_b32 v%d, 16, v%d" % (t0, r),
            "v_and_b32 v%d, 0xffff0000, v%d" % (t0 + 1, r),
            "v_pk_mul_f32 %s, %s, %s" % (vr(t0, 2), vr(t0, 2), sr(sC, 2)),
            "v_cvt_pk_bf16_f32 v%d, v%d, v%d" % (r, t0, t0 + 1),
            "v_accvgpr_write_b32 a%d, v%d" % (QF[X] + i, r)]


gapcost = []


def emit_period(a, jm, tag, smB_prev, zeroB=False, loop_end=None):
    kb, vb = jm % 2, jm % 2
    mf = [mfma_qk("A", kb, s) for s in range(8)]
    mf += [mfma_pv("B", 1 - vb, kh, db, zero=zeroB) for kh in range(2) for db in range(4)]
    mf += [mfma_qk("B", kb, s) for s in range(8)]
    mf += [mfma_pv("A", vb, kh, db) for kh in range(2) for db in range(4)]
    dB = spread(softmax_list("B", "unused", reg=False), GL_B)
    dA = spread(softmax_list("A", "A" + tag), GL_A)
    lds = {n: [] for n in range(32)}
    vl = [vread(jm, kh, u, db) for kh in range(2) for db in range(4) for u in range(2)]
    for i, t in enumerate(vl):
        lds[1 + i].append(t)
    for s in range(8):
        lds[17 + s].append(kread(jm + 1, s))
    adv, dk, dv = dma_group(jm + PD, "G")
    ex = {n: [] for n in range(32)}
    pre = {n: [] for n in range(32)}
    ex[8] += adv[:3]
    ex[9] += adv[3:] + [dk[0]]
    ex[24] += [dk[1]]
    ex[25] += [dk[2], dv[0]]
    ex[26] += [dv[1]]
    ex[28] += [dv[2]]
    if U == 4 and jm == 3:
        for s in range(8):
            ex[[8, 8, 9, 12, 12, 0, 2, 4][s]].append("v_xor_b32 v%d, 0x8000, v%d" % (KA + s, KA + s))
        for db in range(4):
            ex[[24, 25, 28, 31][db]].append("v_xor_b32 v%d, 0x8000, v%d" % (VA + db, VA + db))
    if loop_end is not None:
        if U == 4:
            ex[29] += ["s_xor_b32 s%d, s%d, 0x8000" % (sW0, sW0), "s_xor_b32 s%d, s%d, 0x8000" % (sW1, sW1)]
        ex[31] += ["s_sub_u32 s%d, s%d, 1" % (sCNT, sCNT), "s_cmp_lg_u32 s%d, 0" % sCNT]
    a.comment("---- period jm=%d %s" % (jm, tag))
    a("s_waitcnt vmcnt(%d) lgkmcnt(0)" % (4 * (PD - 2)))
    a.lg = []
    for n in range(32):
        g = []
        if n == 0:
            g.append("s_barrier")
        g += lds[n]
        g += ex[n]
        if n in dA:
            g += dA[n]
        if n <= 7:
            g += smB_prev[n]
        if n >= 26:
            g += dB[n]
        if n == 23:
            g.append(("WAIT", (), ("V",)))
        a(mf[n])
        for t in g:
            a.op(t)
        if jm == 2:
            gapcost.append(sum(cost(t) for t in g))
    if loop_end is not None:
        if DIAG:
            a("s_memtime s[60:61]")
            a("s_memrealtime s[70:71]")
            a("s_waitcnt lgkmcnt(0)")
            a("s_add_u32 m0, s%d, 21" % sCNT)
            a("s_nop 0")
            a("v_writelane_b32 v%d, s60, m0" % VDIAG)
            a("s_add_u32 m0, s%d, 53" % sCNT)
            a("s_nop 0")
            a("v_writelane_b32 v%d, s70, m0" % VDIAG)
            a("s_cmp_lg_u32 s%d, 0" % sCNT)
        a("s_cbranch_scc1 %s" % loop_end)


def emit_rare(a, X):
    s, nm, o = S[X], NM[X], O[X]
    a.label("RARE_%s" % X)
    a("s_nop 15")
    for t in max_list(X):
        a(t)
    a("v_max_f32 v1, 0, v1")
    a("v_sub_f32 v2, 0, v1")
    a("v_exp_f32 v2, v2")
    for i in range(16):
        a("v_sub_f32 v%d, v%d, v1" % (s + i, s + i))
    a("v_sub_f32 v%d, v%d, v1" % (nm, nm))
    for i in range(1, 16):
        a("v_mov_b32 v%d, v%d" % (nm + i, nm))
    for i in range(64):
        a("v_mul_f32 v%d, v%d, v2" % (o + i, o + i))
    a("v_mul_f32 v%d, v%d, v2" % (L[X], L[X]))
    for t in softmax_list(X, None)[:-1]:
        a(t)
    a("s_nop 3")
    a("s_setpc_b64 %s" % sr(sRET, 2))


def srd(a, d, base, off_s, size):
    if off_s is None:
        a("s_mov_b32 s%d, s%d" % (d, base))
        a("s_mov_b32 s%d, s%d" % (d + 1, base + 1))
    else:
        a("s_add_u32 s%d, s%d, %s" % (d, base, off_s))
        a("s_addc_u32 s%d, s%d, 0" % (d + 1, base + 1))
    a("s_mov_b32 s%d, 0x%x" % (d + 2, size))
    a("s_mov_b32 s%d, 0x00020000" % (d + 3))


def gen_prologue(a):
    a.label(NAME + "_kernel")
    a("s_cmp_ge_u32 s2, 256")
    a("s_cbranch_scc1 MAIN_END")
    a("s_load_dwordx16 s[8:23], s[0:1], 0")
    a("s_load_dwordx2 s[24:25], s[0:1], 64")
    if DIAG:
        a("s_memtime s[62:63]")
        a("s_memrealtime s[66:67]")
    if CPF:
        a("s_getpc_b64 s[4:5]")
        a.label("PC_HERE")
        a("v_lshlrev_b32 v2, 7, v0")
        a("v_min_u32 v2, CODE_END-PC_HERE-4, v2")
        a("global_load_dword v%d, v2, s[4:5]" % VCHK)
        a.vm.append("CPF")
    a("s_lshr_b32 s3, s2, 6")
    a("s_lshl_b32 s3, s3, 3")
    a("s_and_b32 s4, s2, 7")
    a("s_add_u32 s%d, s3, s4" % sG)
    a("s_lshr_b32 s%d, s2, 3" % sJ)
    a("s_and_b32 s%d, s%d, 7" % (sJ, sJ))
    a("v_lshrrev_b32 v1, 6, v0")
    a("v_and_b32 v0, 63, v0")
    a("v_readfirstlane_b32 s%d, v1" % sWAVE)
    a("v_and_b32 v2, 31, v0")
    a("v_lshrrev_b32 v3, 5, v0")
    a("v_and_b32 v4, 15, v0")
    a("v_lshrrev_b32 v5, 4, v0")
    a("s_lshl_b32 s%d, s%d, 11" % (sWOFF, sWAVE))
    a("v_lshl_add_u32 v33, v1, 3, v5")
    a("v_and_b32 v34, 15, v33")
    a("v_xor_b32 v34, v34, v4")
    a("v_lshlrev_b32 v35, 8, v33")
    a("v_lshl_add_u32 v%d, v34, 4, v35" % DK0)
    a("v_xor_b32 v34, 4, v34")
    a("v_lshl_add_u32 v%d, v34, 4, v35" % DK1)
    a("v_lshlrev_b32 v34, 2, v5")
    a("v_xor_b32 v34, v34, v4")
    a("v_lshl_add_u32 v%d, v34, 4, v35" % DV)
    a("v_lshl_add_u32 v33, v1, 6, v5")
    a("v_lshlrev_b32 v35, 8, v33")
    a("v_xor_b32 v34, v4, v5")
    for pp in range(4):
        a("v_xor_b32 v36, %d, v34" % (4 * pp))
        a("v_lshl_add_u32 v%d, v36, 4, v35" % (40 + pp))
    a("s_lshl_b32 s3, s%d, 21" % sG)
    a("s_lshl_b32 s4, s%d, 18" % sJ)
    a("s_add_u32 s3, s3, s4")
    a("s_lshl_b32 s4, s%d, 16" % sG)
    a("s_and_b32 s5, s%d, 1" % sWAVE)
    a("s_lshl_b32 s5, s5, 14")
    a("s_lshr_b32 s7, s%d, 1" % sWAVE)
    a("s_lshl_b32 s7, s7, 16")
    a("s_add_u32 s5, s5, s7")
    a("s_add_u32 s5, s5, 0x8000")
    if ROT:
        a("s_and_b32 s%d, s2, 31" % sKO)
        a("s_lshl_b32 s%d, s%d, 13" % (sKO, sKO))
    else:
        a("s_mov_b32 s%d, 0" % sKO)
    a("s_mov_b32 s%d, s%d" % (sKE, sKO))
    a("s_mov_b32 s%d, 1" % sU)
    a("s_mov_b32 s%d, s%d" % (sW0, sWOFF))
    a("s_add_u32 s%d, s%d, 0x8000" % (sW1, sWOFF))
    a("s_waitcnt lgkmcnt(0)")
    srd(a, sK, 10, "s3", 0x40000)
    _, k0, _ = dma_group(0, "G0")
    a(k0[0])
    srd(a, sQ, 8, "s4", 0x10000)
    a.op(k0[1])
    a.op(k0[2])
    for pq in range(4):
        a("s_add_u32 m0, s5, %d" % (pq * 4096))
        a("s_movk_i32 s7, %d" % (pq * 4096))
        for pp in range(4):
            a.op(("VM", "buffer_load_dwordx4 v%d, %s, s7 offen offset:%d lds" % (40 + pp, sr(sQ, 4), 1024 * pp),
                  "QA" if pq < 2 else "QB"))
        if pq == 1:
            srd(a, sV, 12, "s3", 0x40000)
            srd(a, sW, 24, None, 0x2000000)
            a("v_lshlrev_b32 v6, 8, v2")
            a("v_xor_b32 v7, v3, v4")
            for s in range(8):
                a("v_xor_b32 v33, %d, v7" % (2 * s))
                a("v_lshl_add_u32 v%d, v33, 4, v6" % (KA + s))
                a("v_add_u32 v%d, s5, v%d" % (48 + s, KA + s))
            a("s_mov_b32 s%d, %s" % (sC, f32(CSCALE)))
            a("s_mov_b32 s%d, %s" % (sC + 1, f32(CSCALE)))
    a("s_lshl_b32 s3, s%d, 3" % sG)
    a("s_add_u32 s3, s3, s%d" % sJ)
    a("s_lshl_b32 s50, s3, 7")
    a("s_add_u32 s50, s50, 0x%x" % WS_FLAG)
    a("v_lshlrev_b32 v33, 2, v2")
    a("v_mov_b32 v34, 0")
    a("s_cmp_lg_u32 s%d, 0" % sWAVE)
    a("s_cbranch_scc1 SKIP_RESET")
    a("buffer_store_dword v34, v33, %s, s50 offen%s" % (sr(sW, 4), FLFLAG))
    a.label("SKIP_RESET")
    for t in dma_flat(1, "G1"):
        a.op(t)
    stamp(a, 1)
    a("v_lshrrev_b32 v33, 2, v4")
    a("v_lshl_add_u32 v34, v3, 2, v33")
    a("v_lshlrev_b32 v34, 8, v34")
    a("v_and_b32 v35, 1, v5")
    a("v_lshl_add_u32 v34, v35, 5, v34")
    a("v_and_b32 v35, 3, v4")
    a("v_lshl_add_u32 v34, v35, 3, v34")
    a("v_xor_b32 v35, v1, v33")
    a("v_lshl_add_u32 v%d, v35, 6, v34" % VTA)
    a("v_add_u32 v%d, 0x%x, v%d" % (VTA, TREEV, VTA))
    a("v_add_u32 v34, 0x%x, v34" % VRING)
    for db in range(4):
        a("v_xor_b32 v35, %d, v33" % db)
        a("v_lshl_add_u32 v%d, v35, 6, v34" % (VA + db))
    a("v_lshl_add_u32 v%d, v3, 4, v6" % VFRG)
    a("v_lshlrev_b32 v%d, 6, v2" % VMSK)
    a("v_lshl_add_u32 v%d, v3, 3, v%d" % (VMSK, VMSK))
    a("s_lshl_b32 s3, s%d, 13" % sG)
    srd(a, sKT, 14, "s3", 0x2000)
    srd(a, sVT, 16, "s3", 0x2000)
    a("s_lshr_b32 s3, s%d, 2" % sG)
    a("s_lshl_b32 s3, s3, 11")
    srd(a, sMK, 18, "s3", 0x800)
    srd(a, sDB, 22, None, 0x100)
    srd(a, sOUT, 20, "s4", 0x10000)
    a("s_mov_b32 s%d, %s" % (sTHR, f32(THR)))
    a("s_mov_b32 s%d, %d" % (sCNT, NT // U))
    a.wait(("G0", "QA"), ())
    stamp(a, 2)
    for s in range(8):
        a.op(("LG", "ds_read_b128 %s, v%d" % (vr(128 + 4 * s, 4), 48 + s), "QA%d" % s))
    a("s_barrier")
    for s in range(8):
        t = kread(0, s)
        a.op((t[0], t[1], "K0_%d" % s))
    g2 = dma_flat(2, "G2")
    g3 = dma_flat(3, "G3")
    pieces = [g2[:9], g2[9:], g3[:9], g3[9:]]
    for s in range(8):
        a.wait((), ("QA%d" % s,))
        for i in range(4):
            for t in conv_q("A", 4 * s + i):
                a(t)
        if s >= 1:
            a.wait((), ("K0_%d" % (s - 1),))
            a(mfma_qk("A", 0, s - 1, zero=True))
        if s % 2 == 1:
            for t in pieces[s // 2]:
                a.op(t)
    stamp(a, 3)
    a.wait(("QB",), ())
    for s in range(8):
        a.op(("LG", "ds_read_b128 %s, v%d offset:8192" % (vr(160 + 4 * s, 4), 48 + s), "QB%d" % s))
    a.wait((), ("K0_7",))
    a(mfma_qk("A", 0, 7))
    a.wait(("G1",), "ALL")
    a("s_barrier")
    stamp(a, 4)
    a("s_cmp_lg_u32 s%d, 0" % sWAVE)
    a("s_cbranch_scc1 SKIP_ATOM")
    a("v_mov_b32 v5, 1")
    a("v_mov_b32 v6, 0")
    a("s_lshl_b32 s3, s%d, 2" % sG)
    a("s_mov_b64 exec, 1")
    a("buffer_atomic_add v5, v6, %s, s3 offen offset:%d sc1" % (sr(sDB, 4), 4 * DBGC))
    a("s_mov_b64 exec, -1")
    a.label("SKIP_ATOM")
    vl = [vread(0, kh, u, db) for kh in range(2) for db in range(4) for u in range(2)]
    kl = [kread(1, s) for s in range(8)]
    more = []
    for q in range(4, PD + 1):
        more += dma_flat(q, "G%d" % q)
    smA = softmax_list("A", None, first=True)
    for s in range(8):
        for i in range(4):
            for t in conv_q("B", 4 * s + i):
                a(t)
        a.op(vl[2 * s])
        a.op(vl[2 * s + 1])
        if s >= 1:
            a(mfma_qk("B", 0, s - 1, zero=True))
    half = len(smA) // 3
    for t in smA[:half]:
        a(t)
    a(mfma_qk("B", 0, 7))
    rest = smA[half:]
    ins = kl + more
    step = max(1, len(rest) // (len(ins) + 1))
    k = 0
    for i, t in enumerate(rest):
        a(t)
        if i % step == step - 1 and k < len(ins):
            a.op(ins[k])
            k += 1
    while k < len(ins):
        a.op(ins[k])
        k += 1
    a.wait((), ("V",))
    dB = spread(softmax_list("B", None, first=True), GL_B)
    n = 24
    for kh in range(2):
        for db in range(4):
            a(mfma_pv("A", 0, kh, db, zero=True))
            if n >= 26:
                for t in dB[n]:
                    a(t)
            n += 1
    stamp(a, 5)
    return dB


def gen_tail(a):
    a.comment("---- tail")
    a.vm = []
    a.lg = []
    smB = spread(softmax_list("B", "Bt"), GL_B)
    a("v_mov_b32 v%d, 0" % VCHK)
    a("s_lshl_b32 s7, s%d, 2" % sG)
    a("v_lshlrev_b32 v5, 4, v0")
    a.op(("VM", "buffer_load_dword v%d, v%d, %s, s7 offen offset:%d sc1" % (VCHK, VCHK, sr(sDB, 4), 4 * DBGC), "CHK"))
    a("v_and_b32 v6, 31, v0")
    a("v_lshlrev_b32 v6, 3, v6")
    a("s_lshl_b32 s3, s%d, 3" % sG)
    a("s_lshl_b32 s4, s%d, 1" % sWAVE)
    a("s_add_u32 s3, s3, s4")
    a("s_lshl_b32 s4, s3, 3")
    a("s_add_u32 s4, s4, s%d" % sJ)
    a("s_lshl_b32 s58, s4, 13")
    a("s_add_u32 s59, s58, 4096")
    a("s_add_u32 s64, s58, 0x10000")
    a("s_add_u32 s65, s58, 0x11000")
    a("s_lshl_b32 s68, s4, 8")
    a("s_add_u32 s68, s68, 0x%x" % WS_ML)
    a("s_lshl_b32 s69, s3, 7")
    a("s_add_u32 s69, s69, 0x%x" % WS_FLAG)

    def pub(X):
        out = []
        so = ("s58", "s59") if X == "A" else ("s64", "s65")
        for db in range(4):
            for u in range(2):
                t = 96 + 4 * ((db * 2 + u) % 4) if X == "A" else 32 + 4 * ((db * 2 + u) % 2)
                for k in range(4):
                    rr = O[X] + 16 * db + 8 * u + 2 * k
                    out.append("v_cvt_pk_bf16_f32 v%d, v%d, v%d" % (t + k, rr, rr + 1))
                out.append(("VM", "buffer_store_dwordx4 %s, v5, %s, %s offen offset:%d%s" % (
                    vr(t, 4), sr(sW, 4), so[0] if db < 2 else so[1], ((db % 2) * 2 + u) * 1024, STFLAG), "PUB"))
        return out

    def pub_ml(X):
        t = 2 if X == "A" else 48
        return ["v_mov_b32 v%d, v%d" % (t, NM[X]),
                "v_mov_b32 v%d, v%d" % (t + 1, L[X]),
                "v_mov_b32 v7, v%d" % L[X],
                "s_nop 1",
                "v_permlane32_swap_b32 v%d, v7" % (t + 1),
                "v_add_f32 v%d, v%d, v7" % (t + 1, t + 1),
                ("VM", "buffer_store_dwordx2 %s, v6, %s, s68 offen offset:%d%s" % (
                    vr(t, 2), sr(sW, 4), 0 if X == "A" else 2048, STFLAG), "PUB")]
    for n in range(8):
        for t in smB[n]:
            a.op(t)
    pa = pub_ml("A") + pub("A")
    da = spread(pa, list(range(8)))
    vb = (NT - 1) % 2
    n = 0
    for kh in range(2):
        for db in range(4):
            a(mfma_pv("B", vb, kh, db))
            for t in da[n]:
                a.op(t)
            n += 1
    for t in pub_ml("B") + pub("B"):
        a.op(t)
    stamp(a, 10)
    a("s_add_u32 m0, s%d, %d" % (sWOFF, TREEV))
    a("s_lshl_b32 s3, s%d, 13" % sJ)
    a.op(("VM", "buffer_load_dwordx4 v%d, %s, 0 offen lds" % (DV, sr(sVT, 4)), "TREE"))
    a.op(("VM", "buffer_load_dwordx4 v%d, %s, 0 offen offset:1024 lds" % (DV, sr(sVT, 4)), "TREE"))
    for s in range(8):
        a.op(("VM", "buffer_load_dwordx4 %s, v%d, %s, s3 offen offset:%d" % (ar(QT + 4 * s, 4), VFRG, sr(sQ, 4), 32 * s), "TREE"))
    for s in range(8):
        a.op(("VM", "buffer_load_dwordx4 %s, v%d, %s, 0 offen offset:%d" % (ar(KT + 4 * s, 4), VFRG, sr(sKT, 4), 32 * s), "TREE"))
    for k in range(4):
        a.op(("VM", "buffer_load_dwordx2 %s, v%d, %s, 0 offen offset:%d" % (vr(MSK + 2 * k, 2), VMSK, sr(sMK, 4), 16 * k), "TREE"))
    a("v_lshlrev_b32 v17, 7, v0")
    a("s_lshl_b32 s3, s%d, 2" % sJ)
    a("s_add_u32 s3, s3, s69")
    a("v_mov_b32 v18, 1")
    a("s_mov_b32 s49, 0")
    a.wait(("PUB",), ())
    stamp(a, 11)
    a.label("CHK_LOOP")
    a("v_readfirstlane_b32 s4, v%d" % VCHK)
    a("s_add_u32 s49, s49, 1")
    a("s_cmp_ge_u32 s4, 8")
    a("s_cbranch_scc1 CHK_DONE")
    a("s_cmp_ge_u32 s49, %d" % SPIN_MAX)
    a("s_cbranch_scc1 CHK_DONE")
    a("v_mov_b32 v%d, 0" % VCHK)
    a("buffer_load_dword v%d, v%d, %s, s7 offen offset:%d sc1" % (VCHK, VCHK, sr(sDB, 4), 4 * DBGC))
    a("s_waitcnt vmcnt(0)")
    a("s_branch CHK_LOOP")
    a.label("CHK_DONE")
    a("s_mov_b64 exec, 3")
    a.op(("VM", "buffer_store_dword v18, v17, %s, s3 offen%s" % (sr(sW, 4), FLFLAG), "FLAG"))
    a("s_mov_b64 exec, -1")
    a.wait(("TREE",), ())
    a("s_barrier")
    VT = 112
    for kh in range(2):
        for u in range(2):
            a.op(("LG", "ds_read_b64_tr_b16 %s, v%d offset:%d" % (vr(VT + 4 * kh + 2 * u, 2), VTA, (16 * kh + 8 * u) * 256), "VT"))
    ST = 64
    for s in range(8):
        a("v_mfma_f32_32x32x16_bf16 %s, %s, %s, %s" % (vr(ST, 16), ar(KT + 4 * s, 4), ar(QT + 4 * s, 4), "0" if s == 0 else vr(ST, 16)))
    MK = 1.0e9 * LOG2E
    a("s_mov_b32 s3, %s" % f32(MK))
    a("v_mov_b32 v16, %s" % f32(-MK))
    X0 = 80
    for r in range(16):
        src = MSK + (r // 4) * 2 + (r % 4) // 2
        if r % 2 == 0:
            a("v_lshlrev_b32 v%d, 16, v%d" % (X0 + r, src))
        else:
            a("v_and_b32 v%d, 0xffff0000, v%d" % (X0 + r, src))
        a("v_fma_f32 v%d, v%d, s3, v16" % (X0 + r, X0 + r))
    for r in range(16):
        a("v_fma_f32 v%d, v%d, s%d, v%d" % (ST + r, ST + r, sC, X0 + r))
    a("v_max3_f32 v17, v%d, v%d, v%d" % (ST, ST + 1, ST + 2))
    for i in range(3, 15, 2):
        a("v_max3_f32 v17, v17, v%d, v%d" % (ST + i, ST + i + 1))
    a("v_max_f32 v17, v17, v%d" % (ST + 15))
    a("v_mov_b32 v18, v17")
    a("v_permlane32_swap_b32 v17, v18")
    a("v_max_f32 v17, v17, v18")
    a("v_ceil_f32 v17, v17")
    for r in range(16):
        a("v_sub_f32 v%d, v%d, v17" % (ST + r, ST + r))
        a("v_exp_f32 v%d, v%d" % (ST + r, ST + r))
    a("v_add_f32 v18, v%d, v%d" % (ST, ST + 1))
    for r in range(2, 16):
        a("v_add_f32 v18, v18, v%d" % (ST + r))
    a("v_mov_b32 v19, v18")
    a("v_permlane32_swap_b32 v18, v19")
    a("v_add_f32 v18, v18, v19")
    PT = 24
    for k in range(8):
        a("v_cvt_pk_bf16_f32 v%d, v%d, v%d" % (PT + k, ST + 2 * k, ST + 2 * k + 1))
    OT = 96
    a.wait((), "ALL")
    a("v_mfma_f32_32x32x16_bf16 %s, %s, %s, 0" % (vr(OT, 16), vr(VT, 4), vr(PT, 4)))
    a("v_mfma_f32_32x32x16_bf16 %s, %s, %s, %s" % (vr(OT, 16), vr(VT + 4, 4), vr(PT + 4, 4), vr(OT, 16)))
    a("s_lshl_b32 s3, s%d, 3" % sG)
    a("s_add_u32 s3, s3, s%d" % sJ)
    a("s_lshl_b32 s58, s3, 16")
    a("s_add_u32 s58, s58, s%d" % sWOFF)
    a("s_lshl_b32 s59, s3, 11")
    a("s_add_u32 s59, s59, 0x%x" % WS_ML)
    a("v_and_b32 v20, 7, v0")
    a("v_lshlrev_b32 v20, 2, v20")
    a("v_and_b32 v21, 31, v0")
    a("v_lshlrev_b32 v21, 8, v21")
    a("v_lshrrev_b32 v22, 5, v0")
    a("v_lshl_add_u32 v21, v22, 3, v21")
    a("s_lshl_b32 s64, s%d, 13" % sJ)
    a("s_lshl_b32 s65, s%d, 6" % sWAVE)
    a("s_add_u32 s64, s64, s65")
    stamp(a, 12)
    a("s_mov_b32 s49, 0")
    a.label("POLL")
    a("buffer_load_dword v22, v20, %s, s50 offen sc1" % sr(sW, 4))
    a("s_add_u32 s49, s49, 1")
    a("s_waitcnt vmcnt(0)")
    a("v_cmp_ne_u32 vcc, 1, v22")
    a("s_cbranch_vccz POLL_DONE")
    a("s_cmp_lt_u32 s49, %d" % SPIN_MAX)
    a("s_cbranch_scc1 POLL")
    a.label("POLL_DONE")
    a.vm = []
    stamp(a, 13)
    PB, ML = 128, 192
    for i in range(8):
        a.op(("VM", "buffer_load_dwordx2 %s, v6, %s, s59 offen offset:%d%s" % (vr(ML + 2 * i, 2), sr(sW, 4), 256 * i, LDFLAG), "ML"))
    for i in range(8):
        a("s_add_u32 s3, s58, %d" % (i * 8192))
        for u in range(2):
            a.op(("VM", "buffer_load_dwordx4 %s, v5, %s, s3 offen offset:%d%s" % (vr(PB + 8 * i + 4 * u, 4), sr(sW, 4), 1024 * u, LDFLAG), "P%d" % i))
    a("v_sub_f32 v20, 0, v17")
    a.wait(("ML",), ())
    stamp(a, 14)
    a("v_min3_f32 v23, v20, v%d, v%d" % (ML, ML + 2))
    for i in range(2, 8, 2):
        a("v_min3_f32 v23, v23, v%d, v%d" % (ML + 2 * i, ML + 2 * i + 2))
    a("v_sub_f32 v20, v23, v20")
    a("v_exp_f32 v20, v20")
    for i in range(8):
        a("v_sub_f32 v%d, v23, v%d" % (ML + 2 * i, ML + 2 * i))
        a("v_exp_f32 v%d, v%d" % (ML + 2 * i, ML + 2 * i))
    a("v_mul_f32 v22, v20, v18")
    for i in range(8):
        a("v_fmac_f32 v22, v%d, v%d" % (ML + 2 * i, ML + 2 * i + 1))
    a("v_rcp_f32 v22, v22")
    for r in range(16):
        a("v_mul_f32 v%d, v%d, v20" % (OT + r, OT + r))
    for i in range(8):
        a.wait(("P%d" % i,), ())
        for k in range(8):
            src = PB + 8 * i + k
            a("v_lshlrev_b32 v%d, 16, v%d" % (X0 + 2 * k, src))
            a("v_and_b32 v%d, 0xffff0000, v%d" % (X0 + 2 * k + 1, src))
        for r in range(16):
            a("v_fmac_f32 v%d, v%d, v%d" % (OT + r, X0 + r, ML + 2 * i))
    for r in range(16):
        a("v_mul_f32 v%d, v%d, v22" % (OT + r, OT + r))
    for k in range(4):
        a("v_cvt_pk_bf16_f32 v%d, v%d, v%d" % (X0 + 2 * k, OT + 4 * k, OT + 4 * k + 1))
        a("v_cvt_pk_bf16_f32 v%d, v%d, v%d" % (X0 + 2 * k + 1, OT + 4 * k + 2, OT + 4 * k + 3))
        a("buffer_store_dwordx2 %s, v21, %s, s64 offen offset:%d" % (vr(X0 + 2 * k, 2), sr(sOUT, 4), 16 * k))
    if DIAG:
        stamp(a, 15)
        a("s_waitcnt vmcnt(0)")
        stamp(a, 19)
        a("s_memrealtime s[68:69]")
        a("s_waitcnt lgkmcnt(0)")
        a("v_writelane_b32 v%d, s62, 0" % VDIAG)
        a("v_writelane_b32 v%d, s66, 16" % VDIAG)
        a("v_writelane_b32 v%d, s66, 32" % VDIAG)
        a("v_writelane_b32 v%d, s68, 17" % VDIAG)
        a("s_getreg_b32 s3, hwreg(HW_REG_XCC_ID)")
        a("v_writelane_b32 v%d, s3, 18" % VDIAG)
        a("v_writelane_b32 v%d, s49, 20" % VDIAG)
        a("s_lshl_b32 s3, s2, 2")
        a("s_add_u32 s3, s3, s%d" % sWAVE)
        a("s_lshl_b32 s3, s3, 8")
        a("s_add_u32 s3, s3, 0x4000000")
        srd(a, sQ, 24, "s3", 0x100)
        a("v_lshlrev_b32 v1, 2, v0")
        a("buffer_store_dword v%d, v1, %s, 0 offen" % (VDIAG, sr(sQ, 4)))
        if DIAG == 3:
            order = [32, 33, 34, 36, 37, 53 + NT // U - 1, 53 + NT // U // 2, 53, 42, 43, 44, 45, 46, 47, 51]
            a("s_cmp_lg_u32 s%d, 0" % sWAVE)
            a("s_cbranch_scc1 MAIN_END")
            for k, ln in enumerate(order):
                a("v_readlane_b32 s3, v%d, %d" % (VDIAG, ln))
                if k == 0:
                    a("s_not_b32 s4, s3")
                    a("v_writelane_b32 v2, s4, 0")
                a("s_nop 0")
                a("v_writelane_b32 v2, s3, %d" % (k + 1))
            a("s_mov_b64 exec, 0xffff")
            a("buffer_atomic_umax v2, v1, %s, 0 offen sc1" % sr(sDB, 4))
    a.label("MAIN_END")
    a("s_endpgm")


def gen():
    pro = Emit()
    dB0 = gen_prologue(pro)
    emit_period(pro, 1, "p1", dB0, zeroB=True)
    pro("s_branch LOOP_P2")
    lp = Emit()
    lp.label("LOOP")
    for jm in range(U):
        if jm == 2:
            lp.label("LOOP_P2")
        smB = spread(softmax_list("B", "Bl%d" % jm), GL_B)
        emit_period(lp, jm, "l%d" % jm, smB, loop_end=("LOOP" if jm == U - 1 else None))
    print("gap costs:", gapcost, "sum", sum(gapcost), file=sys.stderr)
    tl = Emit()
    gen_tail(tl)
    rr = Emit()
    for X, tag in list(stubs):
        rr.label("STUB_%s" % tag)
        rr("s_call_b64 %s, RARE_%s" % (sr(sRET, 2), X))
        rr("s_branch BACK_%s" % tag)
    emit_rare(rr, "A")
    emit_rare(rr, "B")
    rr.label("CODE_END")
    seq, v = check_hazards(pro.ins, fix=True)
    print("prologue fixes:", len(v), file=sys.stderr)
    for x in v:
        print("   ", x, file=sys.stderr)
    idx = [i for i, x in enumerate(lp.ins) if x.label == "LOOP_P2"][0]
    _, v = check_hazards(seq[-60:] + lp.ins[idx:idx + 60])
    assert not v, v
    _, v = check_hazards(lp.ins + lp.ins)
    assert not v, v
    tail, v = check_hazards(lp.ins[-60:] + tl.ins, fix=True)
    print("tail fixes:", len(v), file=sys.stderr)
    for x in v:
        print("   ", x, file=sys.stderr)
    tail = tail[60:]
    rseq, v = check_hazards(rr.ins, fix=True)
    full = Asm()
    full.ins = seq + lp.ins + tail + rseq
    return full


def kd(name, nvgpr, nsgpr, acc):
    return f""".amdhsa_kernel {name}
  .amdhsa_next_free_vgpr {nvgpr}
  .amdhsa_next_free_sgpr {nsgpr}
  .amdhsa_accum_offset {acc}
  .amdhsa_group_segment_fixed_size 0
  .amdhsa_kernarg_size 72
  .amdhsa_user_sgpr_count 2
  .amdhsa_user_sgpr_kernarg_segment_ptr 1
  .amdhsa_system_sgpr_workgroup_id_x 1
.end_amdhsa_kernel
"""


def main():
    out = sys.argv[1] if len(sys.argv) > 1 else "k3.s"
    m = gen()
    hdr = open("cdna_kernels/%s.s.ref" % NAME).read().split("; Override")[0]
    txt = hdr
    txt += "; @launch grid=(256,1,1) block=(256,1,1) lds=%d\n" % LDS_BYTES
    txt += '.amdgcn_target "amdgcn-amd-amdhsa--gfx950"\n.text\n'
    nm = NAME + "_kernel"
    txt += ".globl %s\n.p2align 8\n.type %s,@function\n" % (nm, nm)
    txt += m.text()
    txt += '.section .rodata,"a"\n.p2align 6\n'
    txt += kd(nm, 512, 96, 256)
    open(out, "w").write(txt)


if __name__ == "__main__":
    main()
```
